```python
import torch

def _softmax(x, axis=-1):
    return torch.softmax(x, dim=axis)

def _gelu(x):
    return torch.nn.functional.gelu(x, approximate='tanh')

def _silu(x):
    return torch.nn.functional.silu(x)

def _sigmoid(x):
    return torch.sigmoid(x)

def _layernorm(x, axis=-1, eps=1e-05):
    m = x.mean(dim=axis, keepdim=True)
    v = x.var(dim=axis, keepdim=True, unbiased=False)
    return (x - m) / torch.sqrt(v + eps)

def _scatter_add(tgt, idx, src, axis=0):
    return tgt.clone().index_add_(axis, idx, src)

def _segment_sum(src, seg, n):
    out = torch.zeros((n,) + src.shape[1:], dtype=src.dtype)
    return out.index_add_(0, seg, src)

def _pad(x, pw):
    flat = tuple((v for pair in reversed(pw) for v in pair))
    return torch.nn.functional.pad(x, flat)
kernel_name = 'adaLN_cond__ssm_conv_s4__glu_gated_swiglu__prompt'

def setup_inputs():

    _w = lambda a: (lambda t: t.to(torch.bfloat16) if t.is_floating_point() else t)(torch.as_tensor(a))

    def _A_setup():
        B, L, D, N = (1, 2048, 512, 128)
        A_re = -(lambda _x: torch.exp(torch.as_tensor(_x)))((lambda *s: torch.randn(*s, dtype=torch.bfloat16) * 3.2)(D, N))
        A_im = torch.pi * (lambda *s: torch.randn(*s, dtype=torch.bfloat16) * 0.05)(D, N)
        B_re = (lambda *s: torch.randn(*s, dtype=torch.bfloat16) * 0.1)(D, N)
        B_im = (lambda *s: torch.randn(*s, dtype=torch.bfloat16) * 0.1)(D, N)
        C_re = (lambda *s: torch.randn(*s, dtype=torch.bfloat16) * 0.1)(D, N)
        C_im = (lambda *s: torch.randn(*s, dtype=torch.bfloat16) * 0.1)(D, N)
        log_dt = (lambda *s: torch.randn(*s, dtype=torch.bfloat16) * 0.05)(D) * 0.5 - 4.0
        Dskip = (lambda *s: torch.randn(*s, dtype=torch.bfloat16) * 0.05)(D)
        return {'u': _w((lambda *s: torch.randn(*s, dtype=torch.bfloat16) * 0.05)(B, L, D)), 'A_re': _w(A_re), 'A_im': _w(A_im), 'B_re': _w(B_re), 'B_im': _w(B_im), 'C_re': _w(C_re), 'C_im': _w(C_im), 'log_dt': _w(log_dt), 'Dskip': _w(Dskip)}
    _A_in = _A_setup()

    def _B_setup():
        B, S, D, F = (1, 2048, 512, 1792)
        return {'x': _w((lambda *s: torch.randn(*s, dtype=torch.bfloat16) * 0.05)(B, S, D)), 'w1': _w((lambda *s: torch.randn(*s, dtype=torch.bfloat16) * 0.4)(D, F) * (2.0 / D) ** 0.5), 'w3': _w((lambda *s: torch.randn(*s, dtype=torch.bfloat16) * 0.4)(D, F) * (2.0 / D) ** 0.5), 'w2': _w((lambda *s: torch.randn(*s, dtype=torch.bfloat16) * 0.4)(F, D) * (2.0 / F) ** 0.5)}
    _B_in = _B_setup()
    return {'A_u': _A_in['u'], 'A_A_re': _A_in['A_re'], 'A_A_im': _A_in['A_im'], 'A_B_re': _A_in['B_re'], 'A_B_im': _A_in['B_im'], 'A_C_re': _A_in['C_re'], 'A_C_im': _A_in['C_im'], 'A_log_dt': _A_in['log_dt'], 'A_Dskip': _A_in['Dskip'], 'B_x': _B_in['x'], 'B_w1': _B_in['w1'], 'B_w3': _B_in['w3'], 'B_w2': _B_in['w2'], 'c': _w((lambda *s: torch.randn(*s, dtype=torch.bfloat16) * 0.2)(1, 512) * 8.0), 'w_mod': _w((lambda *s: torch.randn(*s, dtype=torch.bfloat16) * 0.2)(512, 6 * 512) * 512 ** (-0.5) * 8.0)}

def reference(A_u, A_A_re, A_A_im, A_B_re, A_B_im, A_C_re, A_C_im, A_log_dt, A_Dskip, B_x, B_w1, B_w3, B_w2, c, w_mod):

    def _A_ref(u, A_re, A_im, B_re, B_im, C_re, C_im, log_dt, Dskip):
        Bsz, L, D = u.shape
        dt = torch.exp(log_dt)[:, None]
        A = A_re + 1j * A_im
        Bc = B_re + 1j * B_im
        Cc = C_re + 1j * C_im
        logdA = dt * A
        dB = dt * Bc
        l = (lambda x, dt: x.to(dt))(torch.arange(L), A_re.dtype)
        P = torch.exp(logdA[:, :, None] * l[None, None, :])
        K = torch.einsum('dn,dnl,dn->dl', Cc, P, dB).real
        L2 = 2 * L
        Kp = _pad(K, ((0, 0), (0, L)))
        up = (lambda x, *d: x.permute(*d))(u, 0, 2, 1)
        up = _pad(up, ((0, 0), (0, 0), (0, L)))
        Kf = (lambda x, axes=(-2, -1): torch.fft.rfft2(x.float(), dim=axes))(Kp[:, None, :], axes=(-2, -1))
        Uf = (lambda x, axes=(-2, -1): torch.fft.rfft2(x.float(), dim=axes))(up[:, :, None, :], axes=(-2, -1))
        Yf = Uf * Kf[None, :, :, :]
        y = (lambda x, s, axes=(-2, -1): torch.fft.irfft2(x, s=s, dim=axes).to(torch.bfloat16))(Yf, (1, L2), axes=(-2, -1))[:, :, 0, :L]
        y = (lambda x, *d: x.permute(*d))(y, 0, 2, 1) + u * Dskip[None, None, :]
        return y

    def _B_ref(x, w1, w3, w2):
        gate = torch.einsum('bsd,df->bsf', x, w1)
        up = torch.einsum('bsd,df->bsf', x, w3)
        h = _silu(gate) * up
        out = torch.einsum('bsf,fd->bsd', h, w2)
        return out
    x = A_u
    mod = (_silu(c) @ w_mod).reshape(c.shape[0], 6, 1, -1)
    sa, ca, ga, sb, cb, gb = (mod[:, 0].clone(), mod[:, 1].clone(), mod[:, 2].clone(), mod[:, 3].clone(), mod[:, 4].clone(), mod[:, 5].clone())
    h = _layernorm(x, axis=-1) * (1 + ca) + sa
    x = x + ga * _A_ref(h, A_A_re, A_A_im, A_B_re, A_B_im, A_C_re, A_C_im, A_log_dt, A_Dskip)
    h = _layernorm(x, axis=-1) * (1 + cb) + sb
    x = x + gb * _B_ref(h, B_w1, B_w3, B_w2)
    return x
```

```python
WS_MOD = 0
WS_MEAN = 16384
WS_RINV = 24576
WS_CS = 65536
WS_BIAS = 65536 + 16384
WS_UT = 1 << 20
WS_KQ = 4 << 20
KQ_ARR = 4352
KQ_CH = 8704
WS_X1F = 10 << 20
WS_W13F = 12 << 20
WS_W2F = 17 << 20
WS_ACT = 20 << 20
WS_SIZE = 268435456
```

```python
from common import *
class Asm:
    def __init__(s): s.l = []
    def __call__(s, t):
        for x in t.strip("\n").split("\n"): s.l.append(x if x.strip().endswith(":") else "    " + x.strip())
    def text(s): return "\n".join(s.l) + "\n"
ARG = dict(u=0, Are=8, Aim=16, Bre=24, Bim=32, Cre=40, Cim=48, ldt=56, dsk=64, w1=80, w3=88, w2=96, c=104, wmod=112, out=120, dbg=128, ws=136)
def ldptr(a, sd, name): a(f"s_load_dwordx2 s[{sd}:{sd+1}], s[0:1], {ARG[name]}")
def srd_inplace(a, sd, off, size):
    if off:
        a(f"s_add_u32 s{sd}, s{sd}, {off}\ns_addc_u32 s{sd+1}, s{sd+1}, 0")
    a(f"s_mov_b32 s{sd+2}, {size}\ns_mov_b32 s{sd+3}, 0x00020000")
def srd_from(a, sd, sp, off, size):
    a(f"s_add_u32 s{sd}, s{sp}, {off}\ns_addc_u32 s{sd+1}, s{sp+1}, 0\ns_mov_b32 s{sd+2}, {size}\ns_mov_b32 s{sd+3}, 0x00020000")
def header(a, name):
    a(f".globl {name}\n.p2align 8\n.type {name},@function\n{name}:")
def desc(name, vgpr, sgpr, accum):
    return f""".p2align 6
.amdhsa_kernel {name}
  .amdhsa_next_free_vgpr {vgpr}
  .amdhsa_next_free_sgpr {sgpr}
  .amdhsa_accum_offset {accum}
  .amdhsa_group_segment_fixed_size 0
  .amdhsa_kernarg_size 144
  .amdhsa_user_sgpr_count 2
  .amdhsa_user_sgpr_kernarg_segment_ptr 1
  .amdhsa_system_sgpr_workgroup_id_x 1
.end_amdhsa_kernel
"""
LOG2E = "0x3fb8aa3b"; INV2PI = "0x3e22f983"
def rbf(a, v, tmp=None):
    a(f"v_cvt_pk_bf16_f32 v{v}, v{v}, v{v}\nv_lshlrev_b32 v{v}, 16, v{v}")
def dpp_reduce(a, regs):
    for ctl in ["row_shr:1 row_mask:0xf bank_mask:0xf bound_ctrl:0", "row_shr:2 row_mask:0xf bank_mask:0xf bound_ctrl:0",
                "row_shr:4 row_mask:0xf bank_mask:0xf bound_ctrl:0", "row_shr:8 row_mask:0xf bank_mask:0xf bound_ctrl:0",
                "row_bcast:15 row_mask:0xa bank_mask:0xf", "row_bcast:31 row_mask:0xc bank_mask:0xf"]:
        for r in regs: a(f"v_add_f32_dpp v{r}, v{r}, v{r} {ctl}")
        if len(regs) < 3: a("s_nop 1")

NMOD, NLN, NKG = 96, 64, 512
def gen_ka(a):
    header(a, "ka_kernel")
    a(f"""s_cmp_ge_u32 s2, {NMOD+NLN+NKG}
    s_cbranch_scc1 KA_END
    s_cmp_ge_u32 s2, {NMOD+NLN}
    s_cbranch_scc1 KA_KGEN
    s_cmp_ge_u32 s2, {NMOD}
    s_cbranch_scc1 KA_LN""")
    ldptr(a, 4, 'wmod'); ldptr(a, 8, 'c'); ldptr(a, 12, 'ws')
    a("""v_and_b32 v1, 3, v0
    v_lshrrev_b32 v2, 2, v0
    s_movk_i32 s3, 6144
    v_mul_lo_u32 v3, v2, s3
    v_lshl_add_u32 v3, v1, 4, v3
    s_lshl_b32 s3, s2, 6
    v_add_u32 v3, s3, v3
    v_lshlrev_b32 v4, 1, v2
    s_waitcnt lgkmcnt(0)""")
    srd_inplace(a, 4, 0, 512*6144); srd_inplace(a, 8, 0, 1024); srd_inplace(a, 12, WS_MOD, 12288)
    for r in range(8): a(f"buffer_load_ushort v{8+r}, v4, s[8:11], 0 offen offset:{128*r}")
    for r in range(8):
        a(f"s_mov_b32 s{20+r}, {393216*r}\nbuffer_load_dwordx4 v[{16+4*r}:{19+4*r}], v3, s[4:7], s{20+r} offen")
    for j in range(8): a(f"v_mov_b32 v{48+j}, 0")
    a("s_waitcnt vmcnt(8)")
    for r in range(8): a(f"v_lshlrev_b32 v{8+r}, 16, v{8+r}\nv_mul_f32 v{56+r}, 0xbfb8aa3b, v{8+r}")
    for r in range(8): a(f"v_exp_f32 v{56+r}, v{56+r}")
    for r in range(8): a(f"v_add_f32 v{56+r}, 1.0, v{56+r}")
    for r in range(8): a(f"v_rcp_f32 v{56+r}, v{56+r}")
    for r in range(8): a(f"v_mul_f32 v{8+r}, v{8+r}, v{56+r}")
    for r in range(8): rbf(a, 8+r)
    for r in range(8):
        a(f"s_waitcnt vmcnt({7-r})")
        for j in range(4):
            w = 16+4*r+j
            a(f"v_lshlrev_b32 v56, 16, v{w}\nv_and_b32 v57, 0xffff0000, v{w}\nv_fmac_f32 v{48+2*j}, v{8+r}, v56\nv_fmac_f32 v{49+2*j}, v{8+r}, v57")
    a("""v_lshlrev_b32 v5, 5, v0
    ds_write_b128 v5, v[48:51]
    ds_write_b128 v5, v[52:55] offset:16
    v_and_b32 v6, 31, v0
    v_lshrrev_b32 v7, 5, v0
    v_lshlrev_b32 v7, 10, v7
    v_lshl_add_u32 v7, v6, 2, v7
    s_waitcnt lgkmcnt(0)
    s_barrier""")
    for i in range(8): a(f"ds_read_b32 v{8+i}, v7 offset:{128*i}")
    a("s_waitcnt lgkmcnt(0)")
    for i in range(1, 8): a(f"v_add_f32 v8, v8, v{8+i}")
    a("""v_lshlrev_b32 v5, 2, v0
    ds_write_b32 v5, v8 offset:8192
    v_lshlrev_b32 v6, 2, v6
    s_waitcnt lgkmcnt(0)
    s_barrier""")
    for i in range(8): a(f"ds_read_b32 v{8+i}, v6 offset:{8192+128*i}")
    a("s_waitcnt lgkmcnt(0)")
    for i in range(1, 8): a(f"v_add_f32 v8, v8, v{8+i}")
    rbf(a, 8)
    a("""s_lshl_b32 s3, s2, 7
    v_cmp_gt_u32 vcc, 32, v0
    s_and_saveexec_b64 s[16:17], vcc
    s_cbranch_execz KA_END
    buffer_store_dword v8, v6, s[12:15], s3 offen
    s_endpgm""")
    a("KA_LN:")
    ldptr(a, 4, 'u'); ldptr(a, 16, 'ws')
    a(f"""s_sub_u32 s2, s2, {NMOD}
    v_lshrrev_b32 v1, 6, v0
    v_and_b32 v2, 63, v0
    s_lshl_b32 s3, s2, 5
    v_lshl_add_u32 v3, v1, 3, s3
    v_lshlrev_b32 v4, 10, v3
    v_lshl_add_u32 v4, v2, 4, v4
    s_movk_i32 s20, 4096
    s_waitcnt lgkmcnt(0)""")
    srd_inplace(a, 4, 0, 2048*1024); srd_from(a, 8, 16, WS_UT, 512*4096); srd_from(a, 12, 16, WS_MEAN, 16384)
    for i in range(8): a(f"buffer_load_dwordx4 v[{8+4*i}:{11+4*i}], v4, s[4:7], {'s20' if i>=4 else '0'} offen offset:{1024*(i%4)}")
    a("v_mov_b32 v5, 0x3f803f80")
    for i in range(8): a(f"v_mov_b32 v{40+i}, 0")
    for i in range(8):
        a(f"s_waitcnt vmcnt({7-i})")
        for j in range(4): a(f"v_dot2c_f32_bf16 v{40+i}, v{8+4*i+j}, v5")
    a("s_nop 2")
    dpp_reduce(a, list(range(40, 48)))
    for i in range(8): a(f"v_mul_f32 v{40+i}, 0x3b000000, v{40+i}")
    for i in range(8): a(f"v_readlane_b32 s{24+i}, v{40+i}, 63")
    for i in range(8): a(f"v_mov_b32 v{48+i}, 0")
    for i in range(8):
        for j in range(4):
            w = 8+4*i+j
            a(f"v_lshlrev_b32 v56, 16, v{w}\nv_and_b32 v57, 0xffff0000, v{w}\nv_subrev_f32 v56, s{24+i}, v56\nv_subrev_f32 v57, s{24+i}, v57\nv_fmac_f32 v{48+i}, v56, v56\nv_fmac_f32 v{48+i}, v57, v57")
    a("s_nop 1")
    dpp_reduce(a, list(range(48, 56)))
    for i in range(8): a(f"v_mul_f32 v{48+i}, 0x3b000000, v{48+i}")
    for i in range(8): a(f"v_readlane_b32 s{32+i}, v{48+i}, 63")
    a("s_nop 1")
    for i in range(8): a(f"v_writelane_b32 v56, s{24+i}, {i}\nv_writelane_b32 v57, s{32+i}, {i}")
    rbf(a, 56); rbf(a, 57)
    a("v_add_f32 v57, 0x3727c5ac, v57"); rbf(a, 57)
    a("v_sqrt_f32 v57, v57\ns_nop 0"); rbf(a, 57)
    a("""v_rcp_f32 v57, v57
    v_add_u32 v58, v3, v2
    v_lshlrev_b32 v58, 2, v58
    s_mov_b32 s21, 0x05040100
    s_mov_b32 s22, 0x07060302
    s_mov_b64 s[40:41], exec
    s_mov_b64 exec, 0xff
    buffer_store_dword v56, v58, s[12:15], 0 offen
    s_movk_i32 s23, 8192
    buffer_store_dword v57, v58, s[12:15], s23 offen
    s_mov_b64 exec, s[40:41]
    v_lshlrev_b32 v6, 15, v2
    v_lshl_add_u32 v6, v3, 1, v6""")
    for c in range(8):
        j = c // 2; sel = 's22' if c % 2 else 's21'; o = 60 + 4*c
        for p in range(4): a(f"v_perm_b32 v{o+p}, v{8+4*(2*p+1)+j}, v{8+4*(2*p)+j}, {sel}")
        a(f"s_mov_b32 s{44+c}, {4096*c}\nbuffer_store_dwordx4 v[{o}:{o+3}], v6, s[8:11], s{44+c} offen")
    a("s_endpgm")
    a("KA_KGEN:")
    a("s_load_dwordx8 s[40:47], s[0:1], 8\ns_load_dwordx4 s[48:51], s[0:1], 40\ns_load_dwordx2 s[28:29], s[0:1], 56")
    ldptr(a, 32, 'ws')
    a(f"""s_sub_u32 s2, s2, {NMOD+NLN}
    v_and_b32 v1, 15, v0
    v_lshrrev_b32 v2, 4, v0
    s_lshl_b32 s3, s2, 8
    v_lshl_add_u32 v3, v2, 4, s3
    s_lshl_b32 s3, s2, 1
    v_mov_b32 v4, s3
    s_waitcnt lgkmcnt(0)""")
    for k in range(6): srd_from(a, 4+4*k, 40+2*k, 0, 131072)
    srd_inplace(a, 28, 0, 1024); srd_inplace(a, 32, WS_KQ, 512*KQ_CH)
    a("buffer_load_ushort v32, v4, s[28:31], 0 offen")
    for k in range(6): a(f"buffer_load_dwordx4 v[{8+4*k}:{11+4*k}], v3, s[{4+4*k}:{7+4*k}], 0 offen")
    a("""v_and_b32 v5, 7, v1
    v_lshrrev_b32 v6, 3, v1
    v_lshl_add_u32 v33, v6, 7, v5
    v_and_b32 v5, 3, v1
    v_bfe_u32 v6, v1, 2, 1
    v_lshlrev_b32 v5, 1, v5
    v_lshl_add_u32 v5, v6, 7, v5
    v_add_u32 v5, 256, v5
    v_and_b32 v6, 1, v1
    v_bfe_u32 v7, v1, 1, 2
    v_lshlrev_b32 v6, 2, v6
    v_lshl_add_u32 v6, v7, 7, v6
    v_add_u32 v6, 512, v6
    v_cmp_gt_u32 vcc, 8, v1
    v_lshlrev_b32 v35, 7, v1
    v_add_u32 v35, 1024, v35
    v_cndmask_b32 v34, v6, v5, vcc
    v_lshlrev_b32 v36, 3, v1
    v_cvt_f32_u32 v33, v33
    v_cvt_f32_u32 v34, v34
    v_cvt_f32_u32 v35, v35
    v_cvt_f32_u32 v36, v36
    s_waitcnt vmcnt(6)
    v_lshlrev_b32 v32, 16, v32""")
    a(f"v_mul_f32 v32, {LOG2E}, v32\nv_exp_f32 v32, v32\ns_nop 0"); rbf(a, 32)
    def unp(dst, base, m): a(f"v_lshlrev_b32 v{dst}, 16, v{base+m//2}" if m % 2 == 0 else f"v_and_b32 v{dst}, 0xffff0000, v{base+m//2}")
    a("s_waitcnt vmcnt(4)")
    for m in range(8):
        unp(40+m, 8, m); unp(48+m, 12, m)
        a(f"v_mul_f32 v{40+m}, v32, v{40+m}\nv_mul_f32 v{48+m}, v32, v{48+m}\nv_mul_f32 v{40+m}, {LOG2E}, v{40+m}\nv_mul_f32 v{48+m}, {INV2PI}, v{48+m}")
    a("s_waitcnt vmcnt(0)")
    for m in range(8):
        unp(72, 16, m); unp(73, 20, m); unp(74, 24, m); unp(75, 28, m)
        a(f"""v_mul_f32 v72, v32, v72
        v_mul_f32 v73, v32, v73
        v_mul_f32 v{56+m}, v74, v72
        v_mul_f32 v{64+m}, v74, v73
        v_fma_f32 v{56+m}, -v75, v73, v{56+m}
        v_fmac_f32 v{64+m}, v75, v72""")
    for kap in range(2):
        for t in [3, 0, 1, 2]:
            P = 33 + t
            for m in range(4):
                mm = 4*kap+m
                a(f"v_mul_f32 v{72+m}, v{40+mm}, v{P}\nv_mul_f32 v{76+m}, v{48+mm}, v{P}")
            for m in range(4): a(f"v_fract_f32 v{76+m}, v{76+m}")
            for m in range(4): a(f"v_exp_f32 v{72+m}, v{72+m}\nv_cos_f32 v{80+m}, v{76+m}\nv_sin_f32 v{76+m}, v{76+m}")
            for m in range(4): a(f"v_mul_f32 v{80+m}, v{72+m}, v{80+m}\nv_mul_f32 v{76+m}, v{72+m}, v{76+m}")
            if t == 3:
                for m in range(4):
                    mm = 4*kap+m
                    a(f"""v_mul_f32 v{84+m}, v{56+mm}, v{80+m}
                    v_mul_f32 v{88+m}, v{56+mm}, v{76+m}
                    v_fma_f32 v{84+m}, -v{64+mm}, v{76+m}, v{84+m}
                    v_fma_f32 v{88+m}, -v{64+mm}, v{80+m}, -v{88+m}
                    v_cvt_pk_bf16_f32 v{8+m}, v{84+m}, v{88+m}""")
            else:
                for m in range(4): a(f"v_cvt_pk_bf16_f32 v{12+4*t+m}, v{80+m}, v{76+m}")
                a("s_nop 1")
                a(f"v_mfma_f32_16x16x32_bf16 v[{96+4*t}:{99+4*t}], v[{12+4*t}:{15+4*t}], v[8:11], " + ("0" if kap == 0 else f"v[{96+4*t}:{99+4*t}]"))
    a("""v_lshrrev_b32 v5, 6, v0
    v_mul_u32_u24 v5, 3072, v5
    v_bfe_u32 v6, v0, 4, 2
    v_lshl_add_u32 v6, v1, 2, v6
    v_lshl_add_u32 v5, v6, 4, v5
    v_lshlrev_b32 v6, 2, v0
    s_nop 4""")
    for t in range(3): a(f"ds_write_b128 v5, v[{96+4*t}:{99+4*t}] offset:{1024*t}")
    TAB = 12288 + 16
    a(f"""v_and_b32 v8, 7, v1
    v_lshrrev_b32 v9, 3, v1
    v_lshl_add_u32 v8, v9, 7, v8
    v_lshl_add_u32 v8, v2, 3, v8
    v_and_b32 v9, 3, v1
    v_bfe_u32 v10, v1, 2, 1
    v_lshl_add_u32 v9, v10, 6, v9
    v_lshl_add_u32 v9, v2, 2, v9
    v_add_u32 v9, 256, v9
    v_and_b32 v10, 1, v1
    v_bfe_u32 v11, v1, 1, 2
    v_lshl_add_u32 v10, v11, 5, v10
    v_lshl_add_u32 v10, v2, 1, v10
    v_add_u32 v10, 384, v10
    v_cndmask_b32 v9, v10, v9, vcc
    v_lshl_add_u32 v10, v1, 4, v2
    v_add_u32 v10, 512, v10
    v_lshlrev_b32 v8, 1, v8
    v_lshlrev_b32 v9, 1, v9
    v_lshlrev_b32 v10, 1, v10
    v_mov_b32 v12, 0
    v_mov_b32 v13, 0
    v_mov_b32 v14, 0
    v_mov_b32 v15, 0
    v_mov_b32 v11, 12288
    ds_write_b128 v11, v[12:15]
    s_waitcnt lgkmcnt(0)
    s_barrier""")
    for t in range(3):
        for w in range(4): a(f"ds_read_b32 v{16+4*t+w}, v6 offset:{3072*w+1024*t}")
    a("s_waitcnt lgkmcnt(0)")
    for t in range(3):
        b = 16+4*t
        a(f"v_add_f32 v{b}, v{b}, v{b+1}\nv_add_f32 v{b+2}, v{b+2}, v{b+3}\nv_add_f32 v{b}, v{b}, v{b+2}\nv_cvt_pk_bf16_f32 v{b}, v{b}, v{b}\nds_write_b16 v{8+t}, v{b} offset:{TAB}")
    a(f"""s_mul_i32 s3, s2, {KQ_CH}
    s_add_u32 s36, s3, {KQ_ARR}
    v_mov_b32 v7, v0
    s_waitcnt lgkmcnt(0)
    s_barrier
    s_mov_b32 s37, 0
KA_GATH:
    v_lshlrev_b32 v8, 3, v7""")
    for k in range(9): a(f"v_add_u32 v{16+k}, {k-7}, v8")
    for k in range(9): a(f"v_cvt_f32_i32 v{28+k}, v{16+k}")
    for k in range(9): a(f"v_cvt_pk_bf16_f32 v{28+k}, v{28+k}, v{28+k}")
    for k in range(9): a(f"v_and_b32 v{28+k}, 0xffff, v{28+k}\nv_subrev_u32 v{28+k}, 0x4280, v{28+k}")
    for k in range(9): a(f"v_cmp_gt_i32 vcc, 0x80, v{16+k}\ns_nop 1\nv_cndmask_b32 v{28+k}, v{28+k}, v{16+k}, vcc\nv_lshl_add_u32 v{28+k}, v{28+k}, 1, 16")
    for k in range(9): a(f"ds_read_u16 v{52+k}, v{28+k} offset:12288")
    a("""v_lshlrev_b32 v9, 4, v7
    s_waitcnt lgkmcnt(0)""")
    for k in range(4): a(f"v_lshl_or_b32 v{40+k}, v{53+2*k}, 16, v{52+2*k}\nv_lshl_or_b32 v{48+k}, v{54+2*k}, 16, v{53+2*k}")
    a("""buffer_store_dwordx4 v[40:43], v9, s[32:35], s3 offen
    buffer_store_dwordx4 v[48:51], v9, s[32:35], s36 offen
    s_cmp_lg_u32 s37, 0
    s_cbranch_scc1 KA_END
    s_mov_b32 s37, 1
    v_add_u32 v7, 256, v7
    v_cmp_eq_u32 vcc, 0x100, v7
    s_and_saveexec_b64 s[38:39], vcc
    s_cbranch_execz KA_END
    s_nop 1
    s_branch KA_GATH
KA_END:
    s_endpgm""")
```

```python
import sys
from gen_a import *; from gen_b import *; from gen_c import *
name = "adaLN_cond__ssm_conv_s4__glu_gated_swiglu__prompt"
ref = open(f"cdna_kernels/{name}.s.ref").read().split("\n")
hdr = [l for l in ref if l.startswith(";") and "@launch" not in l and "Override" not in l and "grid=ceil" not in l]
a = Asm()
gen_ka(a); gen_kb(a); gen_kc(a); gen_kd(a)
out = "\n".join(hdr) + "\n"
out += f"; @launch kernel=ka_kernel grid=({NMOD+NLN+NKG},1,1) block=(256,1,1) lds=14336\n"
out += f"; @launch kernel=kb_kernel grid=({NCONV+NWP},1,1) block=(256,1,1) lds={KB_LDS}\n"
out += f"; @launch kernel=kc_kernel grid=({NG1+NW2},1,1) block=(512,1,1) lds={KC_LDS}\n"
out += f"; @launch kernel=kd_kernel grid=(256,1,1) block=(256,1,1) lds={KD_LDS}\n"
out += '.amdgcn_target "amdgcn-amd-amdhsa--gfx950"\n.text\n' + a.text()
out += '.section .rodata,"a"\n' + desc("ka_kernel", 112, 64, 112) + desc("kb_kernel", 192, 72, 192) + desc("kc_kernel", 256, 48, 192) + desc("kd_kernel", 312, 48, 248)
open(sys.argv[1] if len(sys.argv) > 1 else f"cdna_kernels/{name}.s", "w").write(out)
```
